```python
import torch

def _softmax(x, axis=-1):
    return torch.softmax(x, dim=axis)
def _gelu(x):
    return torch.nn.functional.gelu(x, approximate="tanh")
def _silu(x):
    return torch.nn.functional.silu(x)
def _sigmoid(x):
    return torch.sigmoid(x)
def _layernorm(x, axis=-1, eps=1e-5):
    m = x.mean(dim=axis, keepdim=True)
    v = x.var(dim=axis, keepdim=True, unbiased=False)
    return (x - m) / torch.sqrt(v + eps)
def _scatter_add(tgt, idx, src, axis=0):
    return tgt.clone().index_add_(axis, idx, src)
def _segment_sum(src, seg, n):
    out = torch.zeros((n,) + src.shape[1:], dtype=src.dtype)
    return out.index_add_(0, seg, src)
def _pad(x, pw):
    flat = tuple(v for pair in reversed(pw) for v in pair)
    return torch.nn.functional.pad(x, flat)

kernel_name = 'standalone__sliding_local_dilated__prompt'

def setup_inputs():

    _w = (lambda a: (lambda t: t.to(torch.bfloat16) if t.is_floating_point() else t)(torch.as_tensor(a)))
    B, S, D = 1, 2048, 576
    return {
        "x": _w((lambda *s: torch.randn(*s, dtype=torch.bfloat16) * 0.2)(B, S, D)),
        "wqkv": _w((lambda *s: torch.randn(*s, dtype=torch.bfloat16) * 0.2)(D, 3 * D)),
        "wo": _w((lambda *s: torch.randn(*s, dtype=torch.bfloat16) * 0.05)(D, D)),
    }

def reference(x, wqkv, wo):
    B, S, D = x.shape
    H = 32; Dh = D // H
    W, dil = 8, 2
    qkv = (lambda x, *d: x.permute(*d))((x @ wqkv).reshape(B, S, 3, H, Dh), 2, 0, 3, 1, 4)
    q, k, v = qkv[0], qkv[1], qkv[2]
    scale = Dh ** -0.5
    pos = torch.arange(S)
    off = torch.arange(W) * dil
    idx = pos[:, None] - off[None, :]
    mask = idx >= 0
    idx_c = torch.where(mask, idx, 0).reshape(-1)
    kg = k[:, :, idx_c, :].reshape(B, H, S, W, Dh)
    vg = v[:, :, idx_c, :].reshape(B, H, S, W, Dh)
    logits = torch.einsum("bhsd,bhswd->bhsw", q, kg) * scale
    logits = torch.where(mask[None, None, :, :], logits, -1e9)
    attn = _softmax(logits, axis=-1)
    o = torch.einsum("bhsw,bhswd->bhsd", attn, vg)
    return (lambda x, *d: x.permute(*d))(o, 0, 2, 1, 3).reshape(B, S, D) @ wo
```

```python
import sys

HDR = '''; Kernarg layout for this problem (48 bytes, ptrs only, base s[0:1]):
'''

def kd(name, vgpr=128, sgpr=96, acc=None):
    acc = acc or vgpr
    return f'''.p2align 6
.amdhsa_kernel {name}
  .amdhsa_next_free_vgpr {vgpr}
  .amdhsa_next_free_sgpr {sgpr}
  .amdhsa_accum_offset {acc}
  .amdhsa_group_segment_fixed_size 0
  .amdhsa_kernarg_size 48
  .amdhsa_user_sgpr_count 2
  .amdhsa_user_sgpr_kernarg_segment_ptr 1
  .amdhsa_system_sgpr_workgroup_id_x 1
.end_amdhsa_kernel
'''

def entry(name):
    return f'.globl {name}\n.p2align 8\n.type {name},@function\n{name}:\n'

QKV_OFF = 0
O_OFF = 8 << 20

def gemm(name, a_arg, a_off, b_arg, ldb, c_arg, c_off, ncol):
    L = []; A = L.append
    A(entry(name))
    nwg = 32 * ncol
    A(f's_cmp_ge_u32 s2, {nwg}\ns_cbranch_scc1 {name}_end')
    A(f's_load_dwordx2 s[8:9], s[0:1], {a_arg}\ns_load_dwordx2 s[12:13], s[0:1], {b_arg}\ns_load_dwordx2 s[16:17], s[0:1], {c_arg}')
    A('s_and_b32 s20, s2, 31\ns_lshr_b32 s21, s2, 5')
    A('v_lshrrev_b32 v1, 6, v0\nv_and_b32 v2, 63, v0\ns_nop 0\nv_readfirstlane_b32 s22, v1')
    A('s_waitcnt lgkmcnt(0)')
    A(f's_add_u32 s8, s8, {a_off}\ns_addc_u32 s9, s9, 0\ns_and_b32 s9, s9, 0xffff\ns_mov_b32 s10, {2048*1152}\ns_mov_b32 s11, 0x20000')
    A(f's_and_b32 s13, s13, 0xffff\ns_mov_b32 s14, {576*ldb}\ns_mov_b32 s15, 0x20000')
    A(f's_add_u32 s16, s16, {c_off}\ns_addc_u32 s17, s17, 0\ns_and_b32 s17, s17, 0xffff\ns_mov_b32 s18, {2048*ldb}\ns_mov_b32 s19, 0x20000')
    A('v_lshrrev_b32 v3, 3, v0')
    A('v_and_b32 v4, 7, v0')
    A('v_bfe_u32 v5, v3, 1, 3\nv_xor_b32 v5, v5, v4\nv_lshlrev_b32 v5, 4, v5')
    A('s_lshl_b32 s23, s20, 6\nv_add_u32 v6, s23, v3\nv_mul_u32_u24 v6, 1152, v6\nv_add_u32 v6, v6, v5')
    A('v_bfe_u32 v5, v3, 1, 1\nv_bfe_u32 v7, v3, 3, 1\nv_lshl_or_b32 v5, v7, 1, v5\nv_lshlrev_b32 v5, 1, v5\nv_xor_b32 v5, v5, v4\nv_lshlrev_b32 v5, 4, v5')
    A(f'v_mul_u32_u24 v7, {ldb}, v3\nv_add_u32 v7, v7, v5\ns_lshl_b32 s23, s21, 7\nv_add_u32 v7, s23, v7')
    A('s_lshl_b32 s24, s22, 10')
    for kc in range(9):
        for h in range(2):
            A(f's_add_u32 m0, s24, {kc*8192 + h*4096}\ns_mov_b32 s25, {kc*128 + h*32*1152}')
            A('buffer_load_dwordx4 v6, s[8:11], s25 offen lds')
            A(f's_add_u32 m0, s24, {73728 + kc*8192 + h*4096}\ns_mov_b32 s25, {(kc*64 + h*32)*ldb}')
            A('buffer_load_dwordx4 v7, s[12:15], s25 offen lds')
    A('v_and_b32 v8, 15, v2\nv_lshrrev_b32 v9, 4, v2')
    A('v_bfe_u32 v10, v8, 1, 3\nv_xor_b32 v10, v10, v9\nv_lshlrev_b32 v10, 4, v10\nv_lshl_add_u32 v10, v8, 7, v10')
    A('v_xor_b32 v11, 64, v10')
    A('v_bfe_u32 v12, v2, 2, 2\nv_lshl_add_u32 v12, v9, 3, v12')
    A('v_bfe_u32 v13, v12, 1, 1\nv_and_b32 v14, 1, v9\nv_lshl_or_b32 v13, v14, 1, v13\nv_xor_b32 v13, s22, v13\nv_lshlrev_b32 v13, 5, v13')
    A('v_and_b32 v14, 3, v2\nv_lshl_add_u32 v13, v14, 3, v13\nv_lshl_add_u32 v12, v12, 7, v13')
    A('v_add_u32 v12, 73728, v12')
    for i in range(16):
        A(f'v_mov_b32 v{64+i}, 0')
    A('s_waitcnt vmcnt(0)\ns_barrier')
    for s in range(18):
        kc, h = s // 2, s % 2
        if s == 8:
            A('v_add_u32 v10, 32768, v10\nv_add_u32 v11, 32768, v11\nv_add_u32 v12, 32768, v12')
        sub = 32768 if s >= 8 else 0
        A(f'ds_read_b64_tr_b16 v[20:21], v12 offset:{s*4096 - sub}')
        A(f'ds_read_b64_tr_b16 v[22:23], v12 offset:{s*4096 + 512 - sub}')
        for rb in range(4):
            A(f'ds_read_b128 v[{24+4*rb}:{27+4*rb}], v{10+h} offset:{kc*8192 + rb*2048 - sub}')
        for rb in range(4):
            A(f's_waitcnt lgkmcnt({3-rb})')
            A(f'v_mfma_f32_16x16x32_bf16 v[{64+4*rb}:{67+4*rb}], v[20:23], v[{24+4*rb}:{27+4*rb}], v[{64+4*rb}:{67+4*rb}]')
    A(f's_lshl_b32 s23, s20, 6\nv_add_u32 v15, s23, v8\nv_mul_u32_u24 v15, {ldb}, v15\nv_lshl_add_u32 v15, v9, 3, v15')
    A('s_lshl_b32 s23, s21, 7\ns_lshl_b32 s25, s22, 5\ns_add_u32 s23, s23, s25\nv_add_u32 v15, s23, v15')
    A('s_nop 7')
    for rb in range(4):
        A(f'v_cvt_pk_bf16_f32 v{40+2*rb}, v{64+4*rb}, v{65+4*rb}\nv_cvt_pk_bf16_f32 v{41+2*rb}, v{66+4*rb}, v{67+4*rb}')
        A(f's_mov_b32 s25, {rb*16*ldb}')
        A(f'buffer_store_dwordx2 v[{40+2*rb}:{41+2*rb}], v15, s[16:19], s25 offen')
    A(f'{name}_end:\ns_endpgm')
    return '\n'.join(L) + '\n'

def attn(name):
    L = []; A = L.append
    A(entry(name))
    A(f's_cmp_ge_u32 s2, 256\ns_cbranch_scc1 {name}_end')
    A('s_load_dwordx2 s[8:9], s[0:1], 40\ns_waitcnt lgkmcnt(0)')
    A(f's_add_u32 s12, s8, {O_OFF}\ns_addc_u32 s13, s9, 0\ns_and_b32 s13, s13, 0xffff\ns_mov_b32 s14, {2048*1152}\ns_mov_b32 s15, 0x20000')
    A(f's_and_b32 s9, s9, 0xffff\ns_mov_b32 s10, {2048*3456}\ns_mov_b32 s11, 0x20000')
    A('s_lshl_b32 s3, s2, 3\nv_lshrrev_b32 v1, 5, v0\nv_add_u32 v1, s3, v1\nv_and_b32 v2, 31, v0')
    A('v_mul_u32_u24 v3, 36, v2')
    A('v_mul_u32_u24 v4, 3456, v1\nv_add_u32 v4, v4, v3')
    A('v_mul_u32_u24 v5, 1152, v1\nv_add_u32 v5, v5, v3')
    for d in range(9):
        A(f'buffer_load_dword v{10+d}, v4, s[8:11], 0 offen offset:{4*d}')
    A('s_waitcnt vmcnt(0)')
    for d in range(9):
        A(f'v_lshlrev_b32 v{20+2*d}, 16, v{10+d}\nv_and_b32 v{21+2*d}, 0xffff0000, v{10+d}')
    A('s_mov_b32 s20, 0x3eae1ba6')
    import math, struct
    c = 18 ** -0.5 * math.log2(math.e)
    L[-1] = f's_mov_b32 s20, {struct.unpack("<I", struct.pack("<f", c))[0]:#x}'
    for w in range(8):
        A(f'v_subrev_u32 v6, {2*w}, v1\nv_max_i32 v7, 0, v6\nv_mul_u32_u24 v7, 3456, v7\nv_add_u32 v{40+w}, v7, v3')
        for d in range(9):
            A(f'buffer_load_dword v{10+d}, v{40+w}, s[8:11], 0 offen offset:{1152+4*d}')
        A(f'v_mov_b32 v{50+w}, 0\ns_waitcnt vmcnt(0)')
        for d in range(9):
            A(f'v_lshlrev_b32 v8, 16, v{10+d}\nv_and_b32 v9, 0xffff0000, v{10+d}')
            A(f'v_fmac_f32 v{50+w}, v8, v{20+2*d}\nv_fmac_f32 v{50+w}, v9, v{21+2*d}')
        A(f'v_mul_f32 v{50+w}, s20, v{50+w}\nv_cmp_gt_i32 vcc, 0, v6\nv_mov_b32 v8, 0xff800000\ns_nop 1\nv_cndmask_b32 v{50+w}, v{50+w}, v8, vcc')
    A('v_max3_f32 v8, v50, v51, v52\nv_max3_f32 v8, v8, v53, v54\nv_max3_f32 v8, v8, v55, v56\nv_max_f32 v8, v8, v57')
    for w in range(8):
        A(f'v_sub_f32 v{50+w}, v{50+w}, v8')
    for w in range(8):
        A(f'v_exp_f32 v{50+w}, v{50+w}')
    A('s_nop 1\nv_add_f32 v9, v50, v51')
    for w in range(2, 8):
        A(f'v_add_f32 v9, v9, v{50+w}')
    A('v_rcp_f32 v9, v9\ns_nop 1')
    for w in range(8):
        A(f'v_mul_f32 v{50+w}, v{50+w}, v9')
    for d in range(18):
        A(f'v_mov_b32 v{20+d}, 0')
    for w in range(8):
        for d in range(9):
            A(f'buffer_load_dword v{10+d}, v{40+w}, s[8:11], 0 offen offset:{2304+4*d}')
        A('s_waitcnt vmcnt(0)')
        for d in range(9):
            A(f'v_lshlrev_b32 v8, 16, v{10+d}\nv_and_b32 v9, 0xffff0000, v{10+d}')
            A(f'v_fmac_f32 v{20+2*d}, v8, v{50+w}\nv_fmac_f32 v{21+2*d}, v9, v{50+w}')
    for d in range(9):
        A(f'v_cvt_pk_bf16_f32 v{10+d}, v{20+2*d}, v{21+2*d}')
        A(f'buffer_store_dword v{10+d}, v5, s[12:15], 0 offen offset:{4*d}')
    A(f'{name}_end:\ns_endpgm')
    return '\n'.join(L) + '\n'

def empty(name):
    return entry(name) + 's_endpgm\n'

def build(pre=(), post=(), extra_code='', extra_kd=''):
    s = HDR
    for l in pre: s += l + '\n'
    s += '; @launch kernel=g1_kernel grid=(864,1,1) block=(256,1,1) lds=147456\n'
    s += '; @launch kernel=at_kernel grid=(256,1,1) block=(256,1,1) lds=0\n'
    s += '; @launch kernel=g2_kernel grid=(288,1,1) block=(256,1,1) lds=147456\n'
    for l in post: s += l + '\n'
    s += '.amdgcn_target "amdgcn-amd-amdhsa--gfx950"\n.text\n'
    s += gemm('g1_kernel', 0, 0, 8, 3456, 40, QKV_OFF, 27)
    s += attn('at_kernel')
    s += gemm('g2_kernel', 40, O_OFF, 16, 1152, 24, 0, 9)
    s += extra_code
    s += '.section .rodata,"a"\n' + kd('g1_kernel') + kd('at_kernel') + kd('g2_kernel') + extra_kd
    return s

if __name__ == '__main__':
    open('base0.s', 'w').write(build())
    e = '; @launch kernel=em_kernel grid=(256,1,1) block=(256,1,1) lds=0'
    open('base1.s', 'w').write(build(post=[e], extra_code=empty('em_kernel'), extra_kd=kd('em_kernel')))
    open('base2.s', 'w').write(build(post=[e, e, e], extra_code=empty('em_kernel'), extra_kd=kd('em_kernel')))
```

```python
import sys
sys.path.insert(0,'work')
from base_gen import *
def probe(name, n, flags, off):
    L=[]; A=L.append
    A(entry(name))
    A(f's_cmp_ge_u32 s2, 256\ns_cbranch_scc1 {name}_end')
    A(f's_load_dwordx2 s[8:9], s[0:1], 40\ns_waitcnt lgkmcnt(0)')
    A(f's_and_b32 s9, s9, 0xffff\ns_mov_b32 s10, {1<<28}\ns_mov_b32 s11, 0x20000')
    A(f's_lshl_b32 s3, s2, 12\nv_lshl_add_u32 v1, v0, 4, s3\ns_mov_b32 s20, {off}\ns_mov_b32 s21, 0')
    A(f'{name}_loop:')
    for i in range(16):
        A(f'buffer_load_dwordx4 v[{4+4*i}:{7+4*i}], v1, s[8:11], s20 offen {flags}\ns_add_u32 s20, s20, {1<<20}')
    A(f's_add_u32 s21, s21, 16\ns_cmp_lt_u32 s21, {n}\ns_cbranch_scc1 {name}_loop')
    A('s_waitcnt vmcnt(0)')
    A(f'{name}_end:\ns_endpgm')
    return '\n'.join(L)+'\n'
e = '; @launch kernel=pr_kernel grid=(256,1,1) block=(256,1,1) lds=0'
for nm, n, fl in (('a',32,''),('b',32,'nt'),('c',128,''),('d',128,'nt')):
    open(f'probe2_{nm}.s','w').write(build(pre=[e], extra_code=probe('pr_kernel',n,fl,32<<20), extra_kd=kd('pr_kernel')))
```

```python
import re

def regs_of(tok):
    tok = tok.strip()
    tok = re.sub(r'^-|^abs\(|\)$|^\||\|$', '', tok)
    m = re.fullmatch(r'([vas])(\d+)', tok)
    if m: return {(m.group(1), int(m.group(2)))}
    m = re.fullmatch(r'([vas])\[(\d+):(\d+)\]', tok)
    if m: return {(m.group(1), k) for k in range(int(m.group(2)), int(m.group(3)) + 1)}
    if tok == 'vcc': return {('s', 'vcc')}
    if tok == 'm0': return {('s', 'm0')}
    if tok == 'exec': return {('s', 'exec')}
    return set()

TRANS = ('v_exp_f32', 'v_log_f32', 'v_rcp_f32', 'v_rsq_f32', 'v_sqrt_f32', 'v_sin_f32', 'v_cos_f32')

class Ins:
    def __init__(self, text):
        self.text = text
        t = text.split(';')[0].strip()
        self.label = t.endswith(':')
        self.directive = t.startswith('.')
        self.op = t.split()[0] if t else ''
        rest = t[len(self.op):].strip()
        parts = []; depth = 0; cur = ''
        for ch in rest:
            if ch == '[': depth += 1
            if ch == ']': depth -= 1
            if ch == ',' and depth == 0:
                parts.append(cur.strip()); cur = ''
            else: cur += ch
        if cur.strip(): parts.append(cur.strip())
        self.mods = ''
        if parts:
            sp = parts[-1].split(None, 1)
            parts[-1] = sp[0]
            if len(sp) > 1: self.mods = sp[1]
        self.opnds = parts
        op = self.op
        self.kind = 'other'
        R = [regs_of(p) for p in parts]
        self.w = set(); self.r = set(); self.A = self.B = self.C = set(); self.data = set()
        if self.label or self.directive or not op:
            self.kind = 'none'
        elif op.startswith('v_mfma'):
            self.kind = 'mfma'; self.w = R[0]; self.A, self.B, self.C = R[1], R[2], R[3]; self.r = R[1] | R[2] | R[3]
            self.passes = 8 if '32x32' in op else 4
        elif op.startswith('v_'):
            self.kind = 'valu'
            self.w = set(R[0]); self.r = set().union(*R[1:]) if len(R) > 1 else set()
            if 'swap' in op: self.w = R[0] | R[1]; self.r = R[0] | R[1]
            if op.startswith(('v_fmac', 'v_dot2c', 'v_pk_fmac')): self.r |= R[0]
            if '_co_' in op: self.w |= R[1]
            if op.startswith('v_cndmask') and len(parts) == 3: self.r |= {('s', 'vcc')}
        elif op.startswith('ds_read'):
            self.kind = 'ds'; self.w = R[0]; self.r = R[1]
        elif op.startswith('ds_'):
            self.kind = 'ds'; self.r = set().union(*R)
        elif op.startswith(('buffer_', 'global_')):
            self.kind = 'vmem'
            lds = re.search(r'\blds\b', self.mods) is not None
            self.lds = lds
            if 'load' in op and not lds:
                self.w = R[0]; self.r = set().union(*R[1:])
            else:
                self.r = set().union(*R)
                if 'store' in op and ('x4' in op or 'x3' in op):
                    self.data = R[0] if op.startswith('buffer') else R[1]
            if lds: self.r |= {('s', 'm0')}
        elif op.startswith('s_'):
            self.kind = 'salu'
            if op.startswith(('s_cmp', 's_waitcnt', 's_barrier', 's_nop', 's_branch', 's_cbranch', 's_endpgm', 's_sleep', 's_setprio', 's_bitcmp')):
                self.r = set().union(*R) if R else set()
            else:
                self.w = R[0] if R else set(); self.r = set().union(*R[1:]) if len(R) > 1 else set()
    def states(self):
        if self.kind == 'none': return 0
        if self.op == 's_nop': return int(self.opnds[0], 0) + 1
        return 1

def vec(s): return {x for x in s if x[0] in 'va'}
def sca(s): return {x for x in s if x[0] == 's'}

def need(p, c):
    n = 0
    if p.kind == 'valu':
        wv, ws = vec(p.w), sca(p.w)
        if c.kind == 'mfma' and wv & c.r: n = max(n, 2)
        if c.kind == 'valu':
            if ('permlane' in c.op or 'dpp' in c.op or 'row_' in c.mods or 'quad_perm' in c.mods) and wv & c.r: n = max(n, 2)
            if c.op.startswith(('v_readfirstlane', 'v_readlane')) and wv & c.r: n = max(n, 1)
            if p.op.startswith(TRANS) and wv & c.r: n = max(n, 1)
            if ws & c.r: n = max(n, 2)
        if c.kind == 'vmem' and ws & c.r: n = max(n, 5)
        if c.kind == 'salu' and ws & c.r and not c.op.startswith('s_cbranch'): n = max(n, 2)
    if p.kind == 'mfma':
        big = 12 if p.passes == 8 else 8
        if c.kind == 'mfma':
            if p.w & (c.A | c.B): n = max(n, big)
            if p.w & c.C and not (p.w == c.C and p.passes == c.passes): n = max(n, big - 2)
            if p.w & c.w and not (p.w == c.C): n = max(n, big)
        elif c.kind in ('valu', 'ds', 'vmem'):
            if p.w & (c.r | c.w): n = max(n, big)
            if c.kind == 'valu' and vec(p.C) & c.w: n = max(n, 7 if p.passes == 8 else 3)
    if p.kind == 'salu':
        if ('s', 'm0') in p.w and c.kind == 'vmem' and getattr(c, 'lds', False): n = max(n, 1)
    if p.kind == 'vmem' and p.data:
        if c.kind in ('valu', 'mfma') and p.data & c.w: n = max(n, 2)
        if c.kind in ('ds', 'vmem') and p.data & c.w: n = max(n, 1)
    return n

class Asm:
    def __init__(self):
        self.I = []
        self.vm = []
        self.ds = []
        self.nlab = 0
    def __call__(self, text, tag=None):
        for line in text.split('\n'):
            line = line.strip()
            if not line: continue
            ins = Ins(line)
            self.I.append(ins)
            if ins.kind == 'vmem': self.vm.append(tag)
            if ins.kind == 'ds': self.ds.append(tag)
    def label(self, base='L'):
        self.nlab += 1
        return f'{base}_{self.nlab}'
    def _count(self, lst, tags):
        if not isinstance(tags, (list, tuple, set)): tags = [tags]
        idx = [k for k, t in enumerate(lst) if t in tags]
        if not idx: return None
        last = max(idx)
        n = len(lst) - 1 - last
        del lst[:last + 1]
        return n
    def wait(self, vm=None, ds=None):
        parts = []
        if vm is not None:
            if vm == 'all': n = 0; self.vm.clear()
            else: n = self._count(self.vm, vm)
            if n is not None:
                assert n <= 63
                parts.append(f'vmcnt({n})')
        if ds is not None:
            if ds == 'all': n = 0; self.ds.clear()
            else: n = self._count(self.ds, ds)
            if n is not None: parts.append(f'lgkmcnt({min(n, 14)})')
        if parts: self('s_waitcnt ' + ' '.join(parts))
    def finish(self):
        out = []
        for c in self.I:
            if c.kind != 'none':
                dist = 0; pad = 0
                for p in reversed(out):
                    if dist >= 12: break
                    if p.kind != 'none':
                        pad = max(pad, need(p, c) - dist)
                    dist += p.states()
                if pad > 0:
                    out.append(Ins(f's_nop {pad - 1}'))
            out.append(c)
        return '\n'.join(('' if x.label or x.directive else '    ') + x.text for x in out) + '\n'

def vr(a, n=1, k='v'):
    return f'{k}{a}' if n == 1 else f'{k}[{a}:{a + n - 1}]'
```

```python
import sys, math, struct
sys.path.insert(0, 'work')
from asmlib import Asm, vr

NAME = 'standalone__sliding_local_dilated__prompt_kernel'
HDR = '''; Fused sliding-window (dilated) attention block: qkv GEMM + banded softmax attention + output GEMM in one launch.
; @launch grid=(256,1,1) block=(256,1,1) lds=163840
'''
R = [0, 26624, 53248]
QP = 79872; QPS = 5184
WV = 106496
KST = 0
PIM = R[1]
OWN = WV + 3 * 8192
RED = WV + 5 * 8192
def wv_lds(n): return WV + n * 8192 if n < 7 else R[0] + 10240 + (n - 7) * 8192
def wo_lds(n): return (R[2] + n * 8192) if n < 3 else (QP + (n - 3) * 8192) if n < 6 else (WV + (n - 6) * 8192)
GS = 143360; G_LOG = 92160; G_REP = 92160 + 46080
STAMP_OFF = 8 << 20
OOB = 0x40000000
SPIN = 1 << 16

def f32(x): return struct.unpack('<I', struct.pack('<f', x))[0]

sX, sWq, sWo, sOut, sEx, sDbg = 4, 8, 12, 16, 20, 24
sW, sWb, sC, sT, sTT, sKc, sXo, sXo2, sWo1, sWo2, sL = range(40, 51)
sA, sB, sD, sE, sF, sG, sH, sI, sSpin = range(51, 60)
sMask = 60; sScale = 68; sVlo = 70; sProd = 72; sP4 = 81; sQ = 83
sStamp = 84
(vXg0, vXg2, vWg, vOg, vXr0, vXr1, vWrq, vWrk, vVr, vQw0, vQw1, vKw, vB1, vB2, vB1l, vB2l, vB1e, vB2e) = range(1, 19)
vA2 = 19; vA1 = 26
vPloL, vPhiL, vPloE, vPhiE, vPr1, vPr2, vSend, vRecv, vPub, vPub3, vOwnW, vOld, vOld4, vOwnR, vOwnR4 = range(33, 48)
vM = 48; vBias = 52; vWo4 = 56
vOut, vOut2, vOut4, vRed, vRep, vChk, vZ, vFlag = range(60, 68)
vWf = 68; vAcc = 84; vT = 124
def xfrag(n, h, b):
    f = n * 10 + h * 5 + b
    return vr(4 * f, 4, 'a') if f < 64 else vr(152 + 4 * (f - 64), 4)
def wofrag(n, ks, cb, half=None):
    f = n * 8 + ks * 4 + cb
    k, base = ('a', 4 * f) if f < 64 else ('v', 224 + 4 * (f - 64))
    if half is None: return vr(base, 4, k)
    return vr(base + 2 * half, 2, k)

def build(stamps=False, rot='3*(c+t)+x%3', odelay=0, opts=None):
    o = dict(opts or {})
    a = Asm()
    nst = [0]; stamp_names = []
    def stamp(name):
        if stamps and name in stamps and nst[0] < 9:
            a(f's_memtime s[{sStamp + 2*nst[0]}:{sStamp + 2*nst[0] + 1}]'); nst[0] += 1; stamp_names.append(name)
    tail_blocks = []

    a(f'{NAME}:')
    a('s_load_dwordx8 s[28:35], s[0:1], 0\ns_load_dwordx4 s[36:39], s[0:1], 32')
    stamp('start')
    a('s_cmp_ge_u32 s2, 256\ns_cbranch_scc1 L_end')
    a(f'''s_and_b32 s{sA}, s2, 7
          s_lshr_b32 s{sB}, s2, 3
          s_and_b32 s{sD}, s{sA}, 1
          s_lshl_b32 s{sD}, s{sD}, 5
          s_add_u32 s{sB}, s{sB}, s{sD}
          s_lshr_b32 s{sQ}, s{sA}, 1
          v_lshrrev_b32 v{vT}, 6, v0
          v_lshrrev_b32 v{vT+1}, 3, v0
          v_and_b32 v{vT+2}, 7, v0
          v_readfirstlane_b32 s{sW}, v{vT}
          s_cmp_eq_u32 s{sB}, 63
          s_cbranch_scc1 L_agent
          s_mul_i32 s{sC}, s{sB}, 37
          s_lshr_b32 s{sC}, s{sC}, 8
          s_mul_i32 s{sD}, s{sC}, 7
          s_sub_u32 s{sT}, s{sB}, s{sD}
          s_and_b32 s{sD}, s{sQ}, 1
          s_mul_i32 s{sD}, s{sD}, 7
          s_add_u32 s{sTT}, s{sT}, s{sD}''')
    a(f'''s_mul_i32 s{sE}, s{sTT}, {2*73*1152}
          s_lshr_b32 s{sD}, s{sA}, 2
          s_mul_i32 s{sD}, s{sD}, 1152
          s_add_u32 s{sE}, s{sE}, s{sD}
          s_lshl_b32 s{sF}, s{sC}, 7''')
    if rot == '3*(c+t)+x%3':
        a(f'''s_add_u32 s{sD}, s{sC}, s{sT}
              s_mul_i32 s{sG}, s{sD}, 86
              s_lshr_b32 s{sG}, s{sG}, 8
              s_mul_i32 s{sG}, s{sG}, 3
              s_sub_u32 s{sD}, s{sD}, s{sG}
              s_mul_i32 s{sKc}, s{sD}, 3
              s_mul_i32 s{sG}, s{sA}, 86
              s_lshr_b32 s{sG}, s{sG}, 8
              s_mul_i32 s{sG}, s{sG}, 3
              s_sub_u32 s{sG}, s{sA}, s{sG}
              s_add_u32 s{sKc}, s{sKc}, s{sG}''')
    elif rot == 'c+t':
        a(f's_add_u32 s{sKc}, s{sC}, s{sT}\ns_cmp_ge_u32 s{sKc}, 9\ns_cselect_b32 s{sD}, 9, 0\ns_sub_u32 s{sKc}, s{sKc}, s{sD}')
    elif rot == 'none':
        a(f's_mov_b32 s{sKc}, 0')
    r32, pos, t0, t1 = vT + 1, vT + 2, vT + 3, vT + 4
    a(f'''v_bfe_u32 v{t0}, v{r32}, 1, 3
          v_xor_b32 v{t0}, v{t0}, v{pos}
          v_lshlrev_b32 v{t0}, 4, v{t0}
          v_mul_u32_u24 v{vXg0}, 2304, v{r32}
          v_add_u32 v{vXg0}, v{vXg0}, v{t0}
          v_bfe_u32 v{t0}, v{r32}, 1, 1
          v_bfe_u32 v{t1}, v{r32}, 3, 1
          v_lshl_or_b32 v{t0}, v{t1}, 1, v{t0}
          v_lshlrev_b32 v{t0}, 1, v{t0}
          v_xor_b32 v{t0}, v{t0}, v{pos}
          v_lshlrev_b32 v{t0}, 4, v{t0}
          v_mul_u32_u24 v{vWg}, 3456, v{r32}
          v_add_u32 v{vWg}, v{vWg}, v{t0}
          v_and_b32 v{t0}, 3, v{r32}
          v_lshl_add_u32 v{t0}, v{vT}, 2, v{t0}
          v_bfe_u32 v{t1}, v{t0}, 1, 3
          v_xor_b32 v{t1}, v{t1}, v{pos}
          v_add_u32 v{t0}, 64, v{t0}
          v_mul_u32_u24 v{t0}, 2304, v{t0}
          v_lshl_add_u32 v{vXg2}, v{t1}, 4, v{t0}
          s_lshl_b32 s{sWb}, s{sW}, 10''')
    def setk():
        return [f's_lshl_b32 s{sXo}, s{sKc}, 7', f's_mul_i32 s{sWo1}, s{sKc}, {64*3456}',
                f's_add_u32 s{sXo2}, s{sXo}, {32*2304}', f's_add_u32 s{sWo2}, s{sWo1}, {32*3456}',
                f's_add_u32 s{sKc}, s{sKc}, 1\ns_cmp_eq_u32 s{sKc}, 9\ns_cselect_b32 s{sKc}, 0, s{sKc}']
    for x in setk(): a(x)
    a(f's_mov_b32 s{sX+3}, 0x20000\ns_mov_b32 s{sWq+3}, 0x20000')
    a(f's_sub_u32 s{sX+2}, {2048*1152}, s{sE}\ns_sub_u32 s{sWq+2}, {576*3456}, s{sF}')
    a('s_waitcnt lgkmcnt(0)')
    a(f'''s_add_u32 s{sX}, s28, s{sE}
          s_addc_u32 s{sX+1}, s29, 0
          s_and_b32 s{sX+1}, s{sX+1}, 0xffff
          s_add_u32 s{sWq}, s30, s{sF}
          s_addc_u32 s{sWq+1}, s31, 0
          s_and_b32 s{sWq+1}, s{sWq+1}, 0xffff''')
    def dma(lds, v, srd, so, tag, off=0, half=False):
        if half:
            pre = f's_lshr_b32 s{sI}, s{sWb}, 1\ns_add_u32 m0, s{sI}, {lds}\ns_mov_b32 exec_hi, 0'
            return (pre, f'buffer_load_dwordx4 v{v}, s[{srd}:{srd+3}], s{so} offen lds', 's_mov_b32 exec_hi, -1', tag)
        offs = f' offset:{off}' if off else ''
        return (f's_add_u32 m0, s{sWb}, {lds - off}', f'buffer_load_dwordx4 v{v}, s[{srd}:{srd+3}], s{so} offen{offs} lds', None, tag)
    def qk_ops(n):
        s = R[n % 3]; t = f'C{n}'
        return [dma(s, vXg0, sX, sXo, t), dma(s + 10240, vWg, sWq, sWo1, t), dma(s + 18432, vWg, sWq, sWo1, t, 1152),
                dma(s + 4096, vXg0, sX, sXo2, t), dma(s + 8192, vXg2, sX, sXo, t, half=True),
                dma(s + 10240 + 4096, vWg, sWq, sWo2, t), dma(s + 18432 + 4096, vWg, sWq, sWo2, t, 1152)]
    def v_ops(n):
        s = wv_lds(n); t = f'V{n}'
        return [dma(s, vWg, sWq, sWo1, t, 2304), dma(s + 4096, vWg, sWq, sWo2, t, 2304)]
    def o_ops(n):
        s = wo_lds(n); t = f'O{n}'
        return [dma(s, vOg, sWo, sXo, t), dma(s + 4096, vOg, sWo, sXo2, t)]
    def emit(op):
        if isinstance(op, str): a(op); return
        pre, ld, post, tag = op
        a(pre); a(ld, tag)
        if post: a(post)
    for op in qk_ops(0): emit(op)
    stamp('c0issued')
    a(f'''s_add_u32 s{sWo}, s32, s{sF}
          s_addc_u32 s{sWo+1}, s33, 0
          s_and_b32 s{sWo+1}, s{sWo+1}, 0xffff
          s_sub_u32 s{sWo+2}, {576*1152}, s{sF}
          s_mov_b32 s{sWo+3}, 0x20000
          s_add_u32 s{sE}, s{sE}, s{sF}
          s_add_u32 s{sOut}, s34, s{sE}
          s_addc_u32 s{sOut+1}, s35, 0
          s_and_b32 s{sOut+1}, s{sOut+1}, 0xffff
          s_sub_u32 s{sOut+2}, {2048*1152}, s{sE}
          s_mov_b32 s{sOut+3}, 0x20000
          s_mul_i32 s{sD}, s{sQ}, 7
          s_add_u32 s{sD}, s{sD}, s{sT}
          s_mul_i32 s{sD}, s{sD}, {GS}
          s_add_u32 s{sEx}, s38, s{sD}
          s_addc_u32 s{sEx+1}, s39, 0
          s_and_b32 s{sEx+1}, s{sEx+1}, 0xffff
          s_mov_b32 s{sEx+2}, {GS}
          s_mov_b32 s{sEx+3}, 0x20000
          s_mov_b32 s{sDbg}, s36
          s_and_b32 s{sDbg+1}, s37, 0xffff
          s_mov_b32 s{sDbg+2}, 256
          s_mov_b32 s{sDbg+3}, 0x20000''')
    l, g, i, t0, t1, t2, t3 = vT + 5, vT + 6, vT + 7, vT + 8, vT + 9, vT + 10, vT + 11
    wv_ = vT
    a(f'v_and_b32 v{l}, 63, v0\nv_bfe_u32 v{g}, v0, 4, 2\nv_and_b32 v{i}, 15, v0')
    a(f'''v_lshrrev_b32 v{t0}, 5, v{l}
          v_lshlrev_b32 v{t0}, 11, v{t0}
          v_and_b32 v{t1}, 31, v{l}
          v_lshl_add_u32 v{t0}, v{t1}, 4, v{t0}
          v_lshl_add_u32 v{t0}, v{wv_}, 9, v{t0}
          v_add_u32 v{vOwnW}, {OWN}, v{t0}
          s_mul_i32 s{sD}, s{sC}, 10240
          v_add_u32 v{vPub}, s{sD}, v{t0}
          v_mov_b32 v{t3}, {OOB}
          v_cmp_gt_u32 vcc, 32, v{l}
          v_cndmask_b32 v{vPub3}, v{t3}, v{vPub}, vcc''')
    a(f'''s_cmp_eq_u32 s{sW}, 3
          s_cselect_b32 s{sG}, 1, 0
          v_mov_b32 v{t0}, s{sG}
          v_cmp_eq_u32 vcc, 1, v{g}
          v_lshrrev_b32 v{t2}, 1, v{g}
          v_cndmask_b32 v{t0}, v{t2}, v{t0}, vcc
          v_cndmask_b32 v{t1}, v{wv_}, 4, vcc''')
    a(f'''s_add_u32 s{sD}, s{sW}, 1
          s_and_b32 s{sD}, s{sD}, 2
          s_cmp_eq_u32 s{sD}, 0
          s_cselect_b32 s{sG}, 0xffffffff, 0xffff
          s_mov_b32 s{sH}, 0xffff''')
    assert sG % 2 == 0 and sH == sG + 1
    a(f'''v_mad_u32_u24 v{t2}, v{t0}, 20, v{t1}
          v_cndmask_b32 v{t2}, 25, v{t2}, s[{sG}:{sH}]
          v_lshlrev_b32 v{t2}, 10, v{t2}
          v_lshl_add_u32 v{t2}, v{i}, 4, v{t2}
          v_add_u32 v{vPloL}, {PIM + 8}, v{t2}
          v_and_b32 v{vPhiL}, 8, v{i}
          v_add3_u32 v{vPhiL}, v{vPhiL}, v{t2}, s{sI}'''.replace('v_add3_u32', f's_mov_b32 s{sI}, {PIM + 512}\nv_add3_u32'))
    a(f'''v_lshl_add_u32 v{t2}, v{t0}, 1, s{sC}
          v_subrev_u32 v{t2}, 1, v{t2}
          v_cmp_gt_u32 vcc, 9, v{t2}
          s_and_b64 vcc, vcc, s[{sG}:{sH}]
          v_lshlrev_b32 v{t1}, 9, v{t1}
          v_lshl_add_u32 v{t1}, v{i}, 4, v{t1}
          v_add_u32 v{t1}, {G_LOG}, v{t1}
          v_mul_u32_u24 v{vSend}, 2560, v{t0}
          v_mul_u32_u24 v{t2}, 5120, v{t2}
          v_sub_u32 v{t2}, v{t2}, v{vSend}
          v_add_u32 v{t2}, 2560, v{t2}
          v_add_u32 v{vRecv}, v{t2}, v{t1}
          s_mul_i32 s{sD}, s{sC}, 5120
          v_add3_u32 v{vSend}, v{vSend}, v{t1}, s{sD}
          v_cndmask_b32 v{vSend}, v{t3}, v{vSend}, vcc
          v_cndmask_b32 v{vRecv}, v{t3}, v{vRecv}, vcc''')
    pz = vT + 12
    for k in range(4): a(f'v_mov_b32 v{pz+k}, -1')
    def publish(d0, d1, d2, tag):
        a(f'buffer_store_dwordx4 {vr(d0,4)}, v{vPub}, s[{sEx}:{sEx+3}], 0 offen sc1', tag)
        a(f's_mov_b32 s{sI}, 4096')
        a(f'buffer_store_dwordx4 {vr(d1,4)}, v{vPub}, s[{sEx}:{sEx+3}], s{sI} offen sc1', tag)
        a(f's_mov_b32 s{sI}, 8192')
        a(f'buffer_store_dwordx4 {vr(d2,4)}, v{vPub3}, s[{sEx}:{sEx+3}], s{sI} offen sc1', tag)
    def send(d0, d1, tag):
        a(f'buffer_store_dwordx4 {vr(d0,4)}, v{vSend}, s[{sEx}:{sEx+3}], 0 offen sc1', tag)
        a(f'buffer_store_dwordx4 {vr(d1,4)}, v{vSend}, s[{sEx}:{sEx+3}], 0 offen offset:256 sc1', tag)
    publish(pz, pz, pz, 'CLR'); send(pz, pz, 'CLR')
    for x in setk(): a(x)
    for op in qk_ops(1): emit(op)

    zz = vT + 16
    for k in range(4): a(f'v_mov_b32 v{zz+k}, 0')
    a(f'v_lshlrev_b32 v{t0}, 4, v0\nv_add_u32 v{t0}, {QP}, v{t0}')
    for j in range(6): a(f'ds_write_b128 v{t0}, {vr(zz,4)} offset:{j*4096}', 'Z')
    a(f'v_lshlrev_b32 v{t0}, 3, v0\nv_add_u32 v{t0}, {QP + 24576}, v{t0}')
    a(f'ds_write_b64 v{t0}, {vr(zz,2)}', 'Z')
    a(f'''v_bfe_u32 v{t0}, v{r32}, 1, 2
          v_lshlrev_b32 v{t0}, 1, v{t0}
          v_xor_b32 v{t0}, v{t0}, v{pos}
          v_lshlrev_b32 v{t0}, 4, v{t0}
          v_mul_u32_u24 v{vOg}, 1152, v{r32}
          v_add_u32 v{vOg}, v{vOg}, v{t0}''')
    f8 = vT + 20
    a(f'''v_lshrrev_b32 v{f8}, 1, v{i}
          v_xor_b32 v{t0}, v{f8}, v{g}
          v_lshlrev_b32 v{t0}, 4, v{t0}
          v_lshl_add_u32 v{vXr0}, v{i}, 7, v{t0}
          v_xor_b32 v{vXr1}, 64, v{vXr0}''')
    a(f'''v_bfe_u32 v{t0}, v{l}, 2, 2
          v_lshl_add_u32 v{t1}, v{g}, 3, v{t0}
          v_bfe_u32 v{t2}, v{l}, 3, 2
          v_xor_b32 v{t2}, v{t2}, v{wv_}
          v_lshlrev_b32 v{t2}, 5, v{t2}
          v_lshl_add_u32 v{t1}, v{t1}, 7, v{t2}
          v_and_b32 v{t3}, 3, v{l}
          v_lshl_add_u32 v{t1}, v{t3}, 3, v{t1}
          v_add_u32 v{vWrq}, 10240, v{t1}
          v_add_u32 v{vWrk}, 18432, v{t1}
          v_add_u32 v{vVr}, {WV}, v{t1}''')
    a(f'''v_lshrrev_b32 v{t1}, 1, v{g}
          v_lshl_add_u32 v{t0}, v{t1}, 4, v{t0}
          v_and_b32 v{t1}, 1, v{g}
          v_lshl_add_u32 v{t0}, v{t1}, 2, v{t0}
          v_lshl_add_u32 v{t0}, v{t0}, 7, v{t2}
          v_lshl_add_u32 v{t0}, v{t3}, 3, v{t0}
          v_add_u32 v{vWo4}, {R[2]}, v{t0}
          v_xor_b32 v{vWo4+1}, 32, v{vWo4}
          v_xor_b32 v{vWo4+2}, 64, v{vWo4}
          v_xor_b32 v{vWo4+3}, 96, v{vWo4}''')
    assert R[2] % 128 == 0
    a(f'''s_lshl_b32 s{sL}, s{sC}, 3
          s_mul_i32 s{sD}, s{sL}, 57
          s_lshr_b32 s{sD}, s{sD}, 10
          s_mul_i32 s{sD}, s{sD}, 18
          s_sub_u32 s{sL}, s{sL}, s{sD}
          s_sub_u32 s{sA}, 18, s{sL}
          s_cmp_gt_u32 s{sL}, 10
          s_cselect_b32 s{sB}, 3, 7''')
    def piece_of(col, pi, st):
        a(f'''v_add_u32 v{pi}, s{sA}, v{col}
              v_mul_u32_u24 v{pi}, 57, v{pi}
              v_lshrrev_b32 v{pi}, 10, v{pi}
              v_mul_u32_u24 v{st}, 18, v{pi}
              v_subrev_u32 v{st}, s{sA}, v{st}
              v_max_i32 v{st}, 0, v{st}
              v_cmp_eq_u32 vcc, s{sB}, v{pi}
              v_cndmask_b32 v{pi}, v{pi}, 4, vcc''')
    f4 = vT + 21
    a(f'v_and_b32 v{f4}, 3, v{f8}')
    for j, dst in ((0, vQw0), (1, vQw1)):
        a(f'v_lshlrev_b32 v{t0}, 4, v{wv_}\nv_lshl_add_u32 v{t0}, v{g}, 2, v{t0}')
        if j: a(f'v_add_u32 v{t0}, 2, v{t0}')
        piece_of(t0, t1, t2)
        a(f'''v_and_b32 v{t2}, 0xf8, v{t2}
              v_sub_u32 v{t0}, v{t0}, v{t2}
              v_lshlrev_b32 v{t0}, 1, v{t0}
              v_lshlrev_b32 v{t2}, 4, v{f4}
              v_xor_b32 v{t0}, v{t0}, v{t2}
              v_lshl_add_u32 v{t0}, v{i}, 6, v{t0}
              v_mul_u32_u24 v{t1}, {QPS}, v{t1}
              v_add_u32 v{t0}, {QP}, v{t0}
              v_add_u32 v{dst}, v{t0}, v{t1}''')
    a(f'''v_lshrrev_b32 v{t0}, 1, v{g}
          v_lshl_add_u32 v{t0}, v{wv_}, 1, v{t0}
          v_xor_b32 v{t0}, v{t0}, v{f8}
          v_lshlrev_b32 v{t0}, 4, v{t0}
          v_and_b32 v{t1}, 1, v{g}
          v_lshl_add_u32 v{t0}, v{t1}, 3, v{t0}
          v_lshl_add_u32 v{vKw}, v{i}, 7, v{t0}''')
    assert KST == 0
    a(f'''v_xor_b32 v{t0}, v{g}, v{f4}
          v_lshlrev_b32 v{t0}, 4, v{t0}
          v_lshl_add_u32 v{t0}, v{i}, 6, v{t0}
          v_add_u32 v{t0}, {QP}, v{t0}
          v_mov_b32 v{t3}, {QP + 5120}
          v_add_u32 v{t1}, s{sWb}, v{t0}
          v_cmp_gt_u32 vcc, 8, v{i}
          v_cndmask_b32 v{vB1}, v{t3}, v{t1}, vcc
          v_cndmask_b32 v{vB2}, v{t1}, v{t3}, vcc
          s_cmp_eq_u32 s{sW}, 3
          s_cselect_b32 s{sE}, 4, 0
          s_add_u32 s{sF}, s{sW}, 1
          s_mul_i32 s{sD}, s{sE}, {QPS}
          s_add_u32 s{sD}, s{sD}, 4096
          v_add_u32 v{t1}, s{sD}, v{t0}
          v_cndmask_b32 v{vB1l}, v{t3}, v{t1}, vcc
          v_cndmask_b32 v{vB2l}, v{t1}, v{t3}, vcc
          s_mul_i32 s{sD}, s{sF}, {QPS}
          s_add_u32 s{sD}, s{sD}, 4096
          v_add_u32 v{t1}, s{sD}, v{t0}
          v_cndmask_b32 v{vB1e}, v{t3}, v{t1}, vcc
          v_cndmask_b32 v{vB2e}, v{t1}, v{t3}, vcc''')
    a(f'''v_cndmask_b32 v{t3}, 1, 0, vcc
          v_lshlrev_b32 v{t3}, 11, v{t3}
          s_min_u32 s{sD}, s{sW}, 1
          v_mul_u32_u24 v{t2}, s{sD}, v{t3}
          s_cmp_gt_u32 s{sL}, 10
          s_cselect_b32 s{sG}, 36, 54
          s_add_u32 s{sG}, s{sG}, s{sL}
          s_lshr_b32 s{sG}, s{sG}, 3''')
    def kaddr(k, chunk_s, rowoff_s, delta):
        a(f'''v_add_u32 v{t0}, {chunk_s}, v{g}
              v_xor_b32 v{t0}, v{t0}, v{f8}
              v_and_b32 v{t0}, 7, v{t0}
              v_lshlrev_b32 v{t0}, 4, v{t0}
              v_lshl_add_u32 v{t0}, v{i}, 7, v{t0}
              v_add_u32 v{vA2+k}, {rowoff_s}, v{t0}
              v_sub_u32 v{vA1+k}, v{vA2+k}, v{delta}''')
    a(f's_lshl_b32 s{sH}, s{sWb}, 1')
    kaddr(0, '0', f's{sH}', t2)
    for p in (1, 2, 3):
        a(f's_add_u32 s{sD}, s{sL}, {18*(p-1)}\ns_lshr_b32 s{sD}, s{sD}, 3')
        kaddr(p, f's{sD}', f's{sH}', t2)
    kaddr(4, f's{sG}', f's{sH}', t2)
    a(f's_cmp_eq_u32 s{sW}, 3\ns_cselect_b32 s{sD}, s{sG}, 0')
    kaddr(5, f's{sD}', '8192', t3)
    a(f's_mul_i32 s{sD}, s{sW}, 18\ns_add_u32 s{sD}, s{sD}, s{sL}\ns_lshr_b32 s{sD}, s{sD}, 3')
    kaddr(6, f's{sD}', '8192', t3)
    a(f'''v_lshlrev_b32 v{t0}, 1, v{g}
          v_lshrrev_b32 v{t1}, 1, v{g}
          v_or_b32 v{t0}, v{t0}, v{t1}
          v_and_b32 v{t0}, 3, v{t0}
          v_add_u32 v{t0}, 1, v{t0}
          v_mad_u32_u24 v{t0}, v{t0}, 5, v{wv_}
          s_mul_i32 s{sD}, s{sF}, 5
          s_add_u32 s{sD}, s{sD}, 4
          s_cmp_eq_u32 s{sW}, 3
          s_cselect_b32 s{sD}, 25, s{sD}
          v_mov_b32 v{t1}, s{sD}
          v_cmp_eq_u32 vcc, 3, v{g}
          v_cndmask_b32 v{t0}, v{t0}, v{t1}, vcc
          v_lshlrev_b32 v{t0}, 10, v{t0}
          v_lshl_add_u32 v{t0}, v{i}, 4, v{t0}
          v_add_u32 v{vPloE}, {PIM + 8}, v{t0}
          v_and_b32 v{t1}, 8, v{i}
          v_add_u32 v{t0}, {PIM + 512}, v{t0}
          v_add_u32 v{vPhiE}, v{t0}, v{t1}''')
    a(f'v_lshlrev_b32 v{t0}, 4, v{wv_}')
    piece_of(t0, t1, t2)
    a(f'v_mul_u32_u24 v{t2}, 5120, v{t1}\nv_lshl_add_u32 v{t2}, v{l}, 4, v{t2}\nv_add_u32 v{vPr1}, {PIM}, v{t2}')
    a(f'v_add_u32 v{t3}, 15, v{t0}')
    piece_of(t3, vPr2, t2)
    a(f'v_mul_u32_u24 v{t2}, 5120, v{vPr2}\nv_lshl_add_u32 v{t2}, v{l}, 4, v{t2}\nv_add_u32 v{vPr2}, {PIM}, v{t2}')
    a(f'v_add_u32 v{t3}, v{t0}, v{i}')
    piece_of(t3, t0, t2)
    a(f'v_cmp_eq_u32 s[{sVlo}:{sVlo+1}], v{t0}, v{t1}')
    a(f'v_and_b32 v{t0}, 7, v{i}\nv_cmp_gt_u32 vcc, 8, v{i}\nv_cndmask_b32 v{t3}, -1, 0, vcc\nv_mov_b32 v{t1}, 0xffff\nv_mov_b32 v{t2}, 0xffff0000')
    for j in range(4):
        a(f'''v_cmp_le_u32 vcc, {2*j}, v{t0}
              v_cndmask_b32 v{vM+j}, 0, v{t1}, vcc
              v_cmp_le_u32 vcc, {2*j+1}, v{t0}
              v_cndmask_b32 v{f4}, 0, v{t2}, vcc
              v_or_b32 v{vM+j}, v{vM+j}, v{f4}
              v_xor_b32 v{vM+j}, v{vM+j}, v{t3}''')
    for r in range(4):
        m = 0
        for ln in range(64):
            gp = (ln >> 4) & 1; ii = ln & 15; rho = 4 * gp + r
            ok = (rho <= ii) if ii < 8 else (rho >= ii - 7)
            m |= int(ok) << ln
        a(f's_mov_b32 s{sMask+2*r}, {m & 0xffffffff:#x}\ns_mov_b32 s{sMask+2*r+1}, {m >> 32:#x}')
    cs = f32(18 ** -0.5 * math.log2(math.e))
    a(f's_mov_b32 s{sScale}, {cs:#x}\ns_mov_b32 s{sScale+1}, {cs:#x}')
    a(f'''s_cmp_eq_u32 s{sW}, 0
          s_cselect_b32 s{sH}, 0x00ff00ff, 0
          s_mov_b32 s{sG}, 0
          v_mov_b32 v{t0}, {f32(-1e30):#x}
          v_cndmask_b32 v{vBias}, 0, v{t0}, s[{sG}:{sH}]
          v_mov_b32 v{vBias+1}, v{vBias}
          v_mov_b32 v{vBias+2}, v{vBias}
          v_mov_b32 v{vBias+3}, v{vBias}''')
    a(f'''v_lshlrev_b32 v{t0}, 4, v{l}
          v_lshl_add_u32 v{vOld}, v{wv_}, 11, v{t0}
          v_add_u32 v{vOld4}, 8192, v{t0}
          v_add_u32 v{vOwnR}, {OWN}, v{vOld}
          v_add_u32 v{vOwnR4}, {OWN}, v{vOld4}
          v_lshl_add_u32 v{vRed}, v{wv_}, 10, v{t0}
          v_add_u32 v{vRed}, {RED}, v{vRed}
          v_lshl_add_u32 v{t0}, v{wv_}, 4, v{i}
          v_mul_u32_u24 v{t1}, 2304, v{t0}
          v_and_b32 v{t2}, 1, v{g}
          v_xor_b32 v{t2}, v{t2}, v{wv_}
          v_lshl_add_u32 v{t1}, v{t2}, 5, v{t1}
          v_lshrrev_b32 v{t2}, 1, v{g}
          v_lshl_add_u32 v{t1}, v{t2}, 4, v{t1}
          s_cmp_eq_u32 s{sTT}, 0
          s_cselect_b32 s{sD}, 0, 7
          v_mov_b32 v{t3}, {OOB}
          v_cmp_le_u32 vcc, s{sD}, v{t0}
          v_xor_b32 v{t2}, 64, v{t1}
          v_cndmask_b32 v{vOut}, v{t3}, v{t1}, vcc
          v_cndmask_b32 v{vOut2}, v{t3}, v{t2}, vcc
          v_add_u32 v{t0}, 64, v{i}
          v_mul_u32_u24 v{t0}, 2304, v{t0}
          v_lshl_add_u32 v{t0}, v{wv_}, 5, v{t0}
          v_lshl_add_u32 v{vOut4}, v{g}, 3, v{t0}''')
    assert RED % 4096 == 0
    a(f'''s_lshl_b32 s{sD}, s{sC}, 7
          s_add_u32 s{sD}, s{sD}, {G_REP}
          v_mov_b32 v{t0}, s{sD}
          v_cmp_eq_u32 vcc, 0, v0
          v_cndmask_b32 v{vRep}, v{t3}, v{t0}, vcc
          v_min_u32 v{t0}, 8, v{l}
          v_lshlrev_b32 v{t0}, 7, v{t0}
          v_add_u32 v{vChk}, {G_REP}, v{t0}
          s_lshl_b32 s{sD}, s{sQ}, 6
          v_mov_b32 v{vZ}, s{sD}''')
    a(f's_mul_i32 s{sE}, s{sT}, 3')
    a(f's_mov_b32 s{sProd}, s{sC}')
    for n in range(1, 9):
        a(f'''s_add_u32 s{sD}, s{sE}, {n-1}
              s_and_b32 s{sD}, s{sD}, 7
              s_add_u32 s{sD}, s{sD}, s{sC}
              s_add_u32 s{sD}, s{sD}, 1
              s_cmp_ge_u32 s{sD}, 9
              s_cselect_b32 s{sF}, 9, 0
              s_sub_u32 s{sProd+n}, s{sD}, s{sF}''')
    def seto(n):
        return [f's_mul_i32 s{sXo}, s{sProd+n}, {64*1152}', f's_add_u32 s{sXo2}, s{sXo}, {32*1152}']
    stamp('setup')

    accq = lambda b: vAcc + 4 * b
    acck = lambda b: vAcc + 20 + 4 * b
    def reads(n, h):
        s = R[n % 3]; wf = vWf + 8 * h; t = f'r{n}{h}'
        L = [(f'ds_read_b64_tr_b16 {vr(wf,2)}, v{vWrq} offset:{s + h*4096}', t + 'a'),
             (f'ds_read_b64_tr_b16 {vr(wf+2,2)}, v{vWrq} offset:{s + h*4096 + 512}', t + 'a'),
             (f'ds_read_b128 {xfrag(n,h,0)}, v{vXr0+h} offset:{s}', t + 'a'),
             (f'ds_read_b64_tr_b16 {vr(wf+4,2)}, v{vWrk} offset:{s + h*4096}', t + 'b'),
             (f'ds_read_b64_tr_b16 {vr(wf+6,2)}, v{vWrk} offset:{s + h*4096 + 512}', t + 'b')]
        for b in range(1, 5):
            L.append((f'ds_read_b128 {xfrag(n,h,b)}, v{vXr0+h} offset:{s + b*2048}', t + str(b)))
        return L
    def mfmas(n, h):
        wf = vWf + 8 * h; t = f'r{n}{h}'; L = []
        for b in range(5):
            for sec, acc in ((0, accq(b)), (1, acck(b))):
                c = '0' if (n == 0 and h == 0) else vr(acc, 4)
                dep = (t + 'a' if sec == 0 else t + 'b') if b == 0 else (t + str(b))
                L.append((f'v_mfma_f32_16x16x32_bf16 {vr(acc,4)}, {vr(wf+4*sec,4)}, {xfrag(n,h,b)}, {c}', dep))
        return L
    def weave(mf, fill):
        k = 0; n = len(mf)
        for j, (txt, dep) in enumerate(mf):
            if dep: a.wait(ds=dep)
            a(txt)
            tgt = ((j + 1) * len(fill) + n - 1) // n
            while k < tgt:
                it = fill[k]; k += 1
                if isinstance(it, tuple) and len(it) == 2: a(it[0], it[1])
                else: emit(it)
    def spin_check(name, reload, cond):
        a(f'{name}_chk:')
        a(cond)
        a(f's_cbranch_vccnz {name}_retry')
        a(f'{name}_ok:')
        tail_blocks.append(f'''{name}_retry:
            s_cmp_eq_u32 s{sSpin}, 0
            s_cbranch_scc1 {name}_ok
            s_sub_u32 s{sSpin}, s{sSpin}, 1
            {reload}
            s_waitcnt vmcnt(0)
            s_branch {name}_chk''')
    a(f's_mov_b32 s{sSpin}, {SPIN}')
    vq = []
    for n in range(9):
        vq += setk()[1:2] + setk()[3:] + v_ops(n)
    def take_v(k):
        out = []; cnt = 0
        while vq and cnt < k:
            it = vq.pop(0); out.append(it)
            if not isinstance(it, str): cnt += 1
        return out
    go_load = f'buffer_load_dword v{vFlag}, v{vZ}, s[{sDbg}:{sDbg+3}], 0 offen sc1'
    deferred = []
    for n in range(9):
        if n == 8 and deferred:
            weave(deferred, []); deferred = []
        a.wait(vm=f'C{n}', ds='all')
        a('s_barrier')
        if n in (0, 8): stamp(f'A{n}')
        if n + 2 <= 8: ld = setk() + qk_ops(n + 2)
        else: ld = take_v(7)
        if n == o.get('go_at', 3): ld = ld + [('s_nop 0', go_load, None, 'GO')]
        r0, r1 = reads(n, 0), reads(n, 1)
        if deferred:
            for x in r0[:3]: a(*x)
            h = len(ld) // 2
            mix = []
            rr = r0[3:]
            for k in range(max(len(rr), h)):
                if k < len(rr): mix.append(rr[k])
                if k < h: mix.append(ld[k])
            weave(deferred, mix)
            ld = ld[h:]
        else:
            for x in r0: a(*x)
        if n == 8:
            weave(mfmas(n, 0), r1)
            weave(mfmas(n, 1), ld)
        else:
            mix = []
            for k in range(max(len(r1), len(ld))):
                if k < len(r1): mix.append(r1[k])
                if k < len(ld): mix.append(ld[k])
            weave(mfmas(n, 0), mix)
            deferred = mfmas(n, 1)
        if n == 6:
            a.wait(vm='GO')
            spin_check('L_go', go_load, f'v_cmp_eq_u32 vcc, 0, v{vFlag}')
            a(f'buffer_store_dword v{vFlag}, v{vRep}, s[{sEx}:{sEx+3}], 0 offen sc1', 'REP')
    pk = vT
    for b in range(5):
        a(f'v_cvt_pk_bf16_f32 v{pk+4*b}, v{accq(b)}, v{accq(b)+1}\nv_cvt_pk_bf16_f32 v{pk+4*b+1}, v{accq(b)+2}, v{accq(b)+3}')
        a(f'v_cvt_pk_bf16_f32 v{pk+4*b+2}, v{acck(b)}, v{acck(b)+1}\nv_cvt_pk_bf16_f32 v{pk+4*b+3}, v{acck(b)+2}, v{acck(b)+3}')
        a(f'ds_write_b32 v{vQw0}, v{pk+4*b} offset:{b*1024}', 'st')
        a(f'ds_write_b32 v{vQw1}, v{pk+4*b+1} offset:{b*1024}', 'st')
        a(f'ds_write_b64 v{vKw}, {vr(pk+4*b+2,2)} offset:{b*2048}', 'st')
    a.wait(ds='all'); a('s_barrier')
    SL, SE, OP = 68, 84, 100
    def s_reads(k, b1, b2, qoff, slot):
        base = OP + 16 * slot; t = f's{k}'
        a(f'ds_read_b128 {vr(base,4)}, v{vA1+k}', t + 'a')
        a(f'ds_read_b128 {vr(base+4,4)}, v{b1} offset:{qoff}', t + 'a')
        a(f'ds_read_b128 {vr(base+8,4)}, v{vA2+k}', t + 'b')
        a(f'ds_read_b128 {vr(base+12,4)}, v{b2} offset:{qoff}', t + 'b')
    def s_mfma(k, dst, slot, bias):
        base = OP + 16 * slot; t = f's{k}'
        a.wait(ds=t + 'a')
        a(f'v_mfma_f32_16x16x32_bf16 {vr(dst,4)}, {vr(base,4)}, {vr(base+4,4)}, {vr(vBias,4) if bias else 0}')
        a.wait(ds=t + 'b')
        a(f'v_mfma_f32_16x16x32_bf16 {vr(dst,4)}, {vr(base+8,4)}, {vr(base+12,4)}, {vr(dst,4)}')
    items = [(0, vB1, vB2, 0, SL, True), (4, vB1, vB2, 4 * QPS, SL + 4, True), (5, vB1l, vB2l, 0, SL + 8, False),
             (1, vB1, vB2, QPS, SE, True), (2, vB1, vB2, 2 * QPS, SE + 4, True), (3, vB1, vB2, 3 * QPS, SE + 8, True), (6, vB1e, vB2e, 0, SE + 12, False)]
    for j in range(3): s_reads(*items[j][:4], j)
    for j in range(7):
        s_mfma(items[j][0], items[j][4], j % 3, items[j][5])
        if j + 3 < 7: s_reads(*items[j + 3][:4], j % 3)
        if j == 2:
            for r in range(4): a(f'v_mov_b32 v{SL+12+r}, 0')
    def merge(S):
        for r in range(4): a(f'v_permlane32_swap_b32 v{S+r}, v{S+4+r}')
        for r in range(4): a(f'v_permlane32_swap_b32 v{S+8+r}, v{S+12+r}')
        for r in range(4): a(f'v_cndmask_b32 v{S+r}, v{S+4+r}, v{S+r}, s[{sMask+2*r}:{sMask+2*r+1}]')
        for r in range(4): a(f'v_cndmask_b32 v{S+8+r}, v{S+12+r}, v{S+8+r}, s[{sMask+2*r}:{sMask+2*r+1}]')
        for r in range(4): a(f'v_permlane16_swap_b32 v{S+r}, v{S+8+r}')
    merge(SL)
    for r in (0, 1, 2, 3, 8, 9, 10, 11): a(f'v_min_u32 v{SL+r}, -2, v{SL+r}')
    chk_load = f'buffer_load_dword v{vFlag}, v{vChk}, s[{sEx}:{sEx+3}], 0 offen sc1'
    a(chk_load, 'CHK')
    send(SL, SL + 8, 'SEND')
    stamp('sent')
    for op in take_v(99): emit(op)
    for n in range(3):
        for op in seto(n) + o_ops(n): emit(op)
    def softmax(S, plo, phi, T):
        e = [S, S + 1, S + 2, S + 3, S + 8, S + 9, S + 10, S + 11]
        m, sm = T, T + 2
        a(f'v_max3_f32 v{m}, v{e[0]}, v{e[1]}, v{e[2]}\nv_max3_f32 v{m+1}, v{e[3]}, v{e[4]}, v{e[5]}')
        a(f'v_max3_f32 v{m}, v{m}, v{e[6]}, v{e[7]}\nv_max_f32 v{m}, v{m}, v{m+1}')
        a(f'v_mul_f32 v{m}, s{sScale}, v{m}')
        for j in range(4):
            a(f'v_pk_fma_f32 {vr(e[2*j],2)}, {vr(e[2*j],2)}, s[{sScale}:{sScale+1}], {vr(m,2)} op_sel_hi:[1,1,0] neg_lo:[0,0,1] neg_hi:[0,0,1]')
        for j in range(8): a(f'v_exp_f32 v{e[j]}, v{e[j]}')
        a(f'v_pk_add_f32 {vr(m,2)}, {vr(e[0],2)}, {vr(e[2],2)}\nv_pk_add_f32 {vr(sm,2)}, {vr(e[4],2)}, {vr(e[6],2)}')
        a(f'v_pk_add_f32 {vr(m,2)}, {vr(m,2)}, {vr(sm,2)}\nv_add_f32 v{m}, v{m}, v{m+1}\nv_rcp_f32 v{m}, v{m}')
        for j in range(4):
            a(f'v_pk_mul_f32 {vr(e[2*j],2)}, {vr(e[2*j],2)}, {vr(m,2)} op_sel_hi:[1,0]')
        for j in range(4): a(f'v_cvt_pk_bf16_f32 v{S+4+j}, v{e[2*j]}, v{e[2*j+1]}')
        for j in range(4): a(f'v_and_b32 v{S+12+j}, v{S+4+j}, v{vM+j}')
        a(f'ds_write2_b64 v{plo}, {vr(S+12,2)}, {vr(S+14,2)} offset0:0 offset1:32', 'pw')
        for j in range(4): a(f'v_xor_b32 v{S+4+j}, v{S+4+j}, v{S+12+j}')
        a(f'ds_write2_b64 v{phi}, {vr(S+4,2)}, {vr(S+6,2)} offset0:0 offset1:32', 'pw')
    TT = 128
    a(f'v_mov_b32 v{TT}, 0\nv_mov_b32 v{TT+1}, 0')
    for k, p in enumerate((vPloL, vPhiL, vPloE, vPhiE)):
        a(f'v_xor_b32 v{TT+2+k}, 8, v{p}')
        a(f'ds_write2_b64 v{TT+2+k}, {vr(TT,2)}, {vr(TT,2)} offset0:0 offset1:32', 'pw')
    merge(SE)
    softmax(SE, vPloE, vPhiE, TT + 8)
    VA, VF = 100, 120
    def vread(s):
        n, h = s // 2, s % 2; wf = VF + 4 * (s % 2)
        if n < 7: ad, off = vVr, n * 8192 + h * 4096
        else: ad, off = (vWrq if n == 7 else vWrk), h * 4096
        return [(f'ds_read_b64_tr_b16 {vr(wf,2)}, v{ad} offset:{off}', f'v{s}'), (f'ds_read_b64_tr_b16 {vr(wf+2,2)}, v{ad} offset:{off+512}', f'v{s}')]
    recv_load = (f'buffer_load_dwordx4 {vr(SL+4,4)}, v{vRecv}, s[{sEx}:{sEx+3}], 0 offen sc1\n'
                 f'buffer_load_dwordx4 {vr(SL+12,4)}, v{vRecv}, s[{sEx}:{sEx+3}], 0 offen offset:256 sc1')
    for grp in range(3):
        a.wait(vm=f'V{3*grp+2}', ds='all'); a('s_barrier')
        if grp == 0: stamp('V0')
        ld = []
        if grp < 2:
            for n in range(3 + 3 * grp, 6 + 3 * grp): ld += seto(n) + o_ops(n)
        if grp == 1:
            a.wait(vm='CHK')
            spin_check('L_rep', chk_load, f'v_cmp_eq_u32 vcc, 0, v{vFlag}')
            a(recv_load, 'RECV')
        for x in vread(6 * grp): a(*x)
        per = (len(ld) + 5) // 6
        for s in range(6 * grp, 6 * grp + 6):
            n, h = s // 2, s % 2
            mf = [(f'v_mfma_f32_16x16x32_bf16 {vr(VA+4*b,4)}, {xfrag(n,h,b)}, {vr(VF+4*h,4)}, {0 if s == 0 else vr(VA+4*b,4)}', f'v{s}' if b == 0 else None) for b in range(5)]
            fill = (vread(s + 1) if s % 6 < 5 else []) + ld[:per]
            ld = ld[per:]
            weave(mf, fill)
    VLO, VHI = 128, 140
    for k in range(2): a(f'v_mov_b32 v{VLO+k}, 0\nv_mov_b32 v{VHI+k}, 0')
    for b in range(5):
        for k in range(2):
            a(f'v_cvt_pk_bf16_f32 v{VHI+2+2*b+k}, v{VA+4*b+2*k}, v{VA+4*b+2*k+1}')
    for j in range(2, 12): a(f'v_cndmask_b32 v{VLO+j}, 0, v{VHI+j}, s[{sVlo}:{sVlo+1}]')
    for j in range(2, 12): a(f'v_xor_b32 v{VHI+j}, v{VHI+j}, v{VLO+j}')
    stamp('Vdone')
    a.wait(vm='RECV')
    T2 = 120
    spin_check('L_rx', recv_load,
               f'v_max3_u32 v{T2}, v{SL+4}, v{SL+5}, v{SL+6}\nv_max3_u32 v{T2+1}, v{SL+7}, v{SL+12}, v{SL+13}\n'
               f'v_max3_u32 v{T2}, v{T2}, v{SL+14}, v{SL+15}\nv_max_u32 v{T2}, v{T2}, v{T2+1}\nv_cmp_eq_u32 vcc, -1, v{T2}')
    stamp('rx')
    for j in (0, 2, 8, 10): a(f'v_pk_add_f32 {vr(SL+j,2)}, {vr(SL+j,2)}, {vr(SL+4+j,2)}')
    softmax(SL, vPloL, vPhiL, T2)
    a.wait(ds='all'); a('s_barrier')
    PB, OA, OP2 = 152, 100, 84
    for b in range(5):
        a(f'ds_read_b128 {vr(PB+8*b,4)}, v{vPr1} offset:{b*1024}', f'p{b}a')
        a(f'ds_read_b128 {vr(PB+8*b+4,4)}, v{vPr2} offset:{b*1024}', f'p{b}b')
    for b in range(5):
        a.wait(ds=f'p{b}a')
        a(f'v_mfma_f32_16x16x32_bf16 {vr(OA+4*b,4)}, {vr(VLO+2*b,4)}, {vr(PB+8*b,4)}, 0')
        a.wait(ds=f'p{b}b')
        a(f'v_mfma_f32_16x16x32_bf16 {vr(OA+4*b,4)}, {vr(VHI+2*b,4)}, {vr(PB+8*b+4,4)}, {vr(OA+4*b,4)}')
    for b in range(5):
        for k in range(2): a(f'v_cvt_pk_bf16_f32 v{OP2+2*b+k}, v{OA+4*b+2*k}, v{OA+4*b+2*k+1}')
    for j in range(10): a(f'v_min_u32 v{OP2+j}, -2, v{OP2+j}')
    for q in range(3):
        for k in range(2): a(f'v_permlane32_swap_b32 v{OP2+4*q+k}, v{OP2+4*q+2+k}')
    publish(OP2, OP2 + 4, OP2 + 8, 'PUB')
    stamp('pub')
    for q in range(3): a(f'ds_write_b128 v{vOwnW}, {vr(OP2+4*q,4)} offset:{q*4096}', 'ow')
    for n in range(9): a(f's_mul_i32 s{sProd+n}, s{sProd+n}, 10240')
    a(f's_cmp_eq_u32 s{sW}, 1\ns_cselect_b32 s{sP4}, s{sProd+3}, s{sProd+1}\ns_cselect_b32 s{sP4+1}, s{sProd+4}, s{sProd+2}')
    a(f's_cmp_eq_u32 s{sW}, 2\ns_cselect_b32 s{sP4}, s{sProd+5}, s{sP4}\ns_cselect_b32 s{sP4+1}, s{sProd+6}, s{sP4+1}')
    a(f's_cmp_eq_u32 s{sW}, 3\ns_cselect_b32 s{sP4}, s{sProd+7}, s{sP4}\ns_cselect_b32 s{sP4+1}, s{sProd+8}, s{sP4+1}')
    a.wait(vm='O8', ds='all'); a('s_barrier')
    OF = 128
    A2, A4 = 68, 100
    of = lambda k: OF + 4 * k
    for ks in range(2):
        a(f'ds_read_b128 {vr(of(ks),4)}, v{vOwnR} offset:{ks*1024}', 'own')
        a(f'ds_read_b128 {vr(of(2+ks),4)}, v{vOwnR4} offset:{ks*1024}', 'own')
    def wo_reads(n):
        base = wo_lds(n) - (R[2] if n < 6 else WV)
        for ks in range(2):
            for cb in range(4):
                for hf in range(2):
                    a(f'ds_read_b64_tr_b16 {wofrag(n,ks,cb,hf)}, v{vWo4+cb} offset:{base + ks*4096 + hf*1024}', f'w{n}')
    def oload(k, v, so, ks):
        return f'buffer_load_dwordx4 {vr(of(k),4)}, v{v}, s[{sEx}:{sEx+3}], s{so} offen offset:{ks*1024} sc1'
    groups = [('g4', [oload(4 + 2*j + ks, vOld4, sP4 + j, ks) for j in range(2) for ks in range(2)], [4, 5, 6, 7])]
    for n in range(1, 9):
        groups.append((f'g{n}', [oload(6 + 2*n + ks, vOld, sProd + n, ks) for ks in range(2)], [6 + 2*n, 7 + 2*n]))
    groups[0] = ('gx',) + groups[0][1:]
    issue_after = o.get('oissue', 5)
    for n in range(9):
        if n == 6:
            for cb in range(4): a(f'v_add_u32 v{vWo4+cb}, {WV - R[2]}, v{vWo4+cb}')
        wo_reads(n)
        if n == 1:
            a.wait(ds='w0')
            for ks in range(2):
                for cb in range(4):
                    a(f'v_mfma_f32_16x16x32_bf16 {vr(A2+4*cb,4)}, {wofrag(0,ks,cb)}, {vr(of(ks),4)}, {0 if ks == 0 else vr(A2+4*cb,4)}')
                a(f'v_mfma_f32_16x16x32_bf16 {vr(A4,4)}, {wofrag(0,ks,0)}, {vr(of(2+ks),4)}, {0 if ks == 0 else vr(A4,4)}')
        if n == issue_after:
            for tag, lds_, _ in groups:
                for x in lds_: a(x, tag)
    a.wait(ds='all')
    TC = 120
    def check(name, tag, lds_, frs):
        a.wait(vm=tag)
        regs = [of(k) + j for k in frs for j in range(4)]
        txt = f'v_max3_u32 v{TC}, v{regs[0]}, v{regs[1]}, v{regs[2]}\n'
        k = 3
        while k + 1 < len(regs):
            txt += f'v_max3_u32 v{TC}, v{TC}, v{regs[k]}, v{regs[k+1]}\n'; k += 2
        txt += f'v_max_u32 v{TC}, v{TC}, v{regs[k]}\nv_cmp_eq_u32 vcc, -1, v{TC}'
        spin_check(name, '\n'.join(lds_), txt)
    check('L_gx', *groups[0])
    stamp('first')
    for w in range(4):
        if w < 3: a(f's_cmp_lg_u32 s{sW}, {w}\ns_cbranch_scc1 L_x{w+1}')
        for j in range(2):
            for ks in range(2):
                for cb in range(4):
                    first = (j == 0 and ks == 0 and cb > 0)
                    a(f'v_mfma_f32_16x16x32_bf16 {vr(A4+4*cb,4)}, {wofrag(2*w+1+j,ks,cb)}, {vr(of(4+2*j+ks),4)}, {0 if first else vr(A4+4*cb,4)}')
        if w < 3: a(f's_branch L_xdone\nL_x{w+1}:')
    a('L_xdone:')
    for n in range(1, 9):
        check(f'L_g{n}', *groups[n])
        for ks in range(2):
            for cb in range(4):
                a(f'v_mfma_f32_16x16x32_bf16 {vr(A2+4*cb,4)}, {wofrag(n,ks,cb)}, {vr(of(6+2*n+ks),4)}, {vr(A2+4*cb,4)}')
        if n == 1:
            for cb in range(1, 4):
                a(f'v_xor_b32 v{TC+cb}, {cb << 10}, v{vRed}')
                a(f'ds_write_b128 v{TC+cb}, {vr(A4+4*cb,4)} offset:{(cb-1)*4096}', 'rw')
        if n == 3:
            a.wait(ds='all'); a('s_barrier')
            for j in range(3): a(f'ds_read_b128 {vr(A4+4+4*j,4)}, v{vRed} offset:{j*4096}', 'rr')
        if n == 5:
            a.wait(ds='all')
            for j in range(3):
                for k in range(2): a(f'v_pk_add_f32 {vr(A4+2*k,2)}, {vr(A4+2*k,2)}, {vr(A4+4+4*j+2*k,2)}')
            for k in range(2): a(f'v_cvt_pk_bf16_f32 v{A4+4+k}, v{A4+2*k}, v{A4+2*k+1}')
            a(f'buffer_store_dwordx2 {vr(A4+4,2)}, v{vOut4}, s[{sOut}:{sOut+3}], 0 offen', 'OUT4')
    OP3 = 84
    for cb in range(4):
        for k in range(2): a(f'v_cvt_pk_bf16_f32 v{OP3+2*cb+k}, v{A2+4*cb+2*k}, v{A2+4*cb+2*k+1}')
    for q in range(2):
        for k in range(2): a(f'v_permlane16_swap_b32 v{OP3+4*q+k}, v{OP3+4*q+2+k}')
    a(f'buffer_store_dwordx4 {vr(OP3,4)}, v{vOut}, s[{sOut}:{sOut+3}], 0 offen')
    a(f'buffer_store_dwordx4 {vr(OP3+4,4)}, v{vOut2}, s[{sOut}:{sOut+3}], 0 offen')
    if stamps:
        a('s_memtime s[28:29]\ns_memrealtime s[30:31]\ns_waitcnt vmcnt(0) lgkmcnt(0)\ns_memtime s[32:33]\ns_waitcnt lgkmcnt(0)')
        a(f's_add_u32 s{sEx}, s38, {STAMP_OFF}\ns_addc_u32 s{sEx+1}, s39, 0\ns_and_b32 s{sEx+1}, s{sEx+1}, 0xffff\ns_mov_b32 s{sEx+2}, 0x100000')
        vals = [f's{sStamp+2*k}' for k in range(nst[0])] + ['s28', 's32', 's30', f's{sSpin}']
        stamp_names.extend(['stored', 'acked', 'rt', 'spin'])
        for k, sv in enumerate(vals): a(f'v_mov_b32 v{100+k}, {sv}')
        a(f's_lshl_b32 s{sD}, s2, 2\ns_add_u32 s{sD}, s{sD}, s{sW}\ns_lshl_b32 s{sD}, s{sD}, 6\nv_mov_b32 v1, s{sD}\ns_mov_b64 exec, 1')
        for q in range(4): a(f'buffer_store_dwordx4 {vr(100+4*q,4)}, v1, s[{sEx}:{sEx+3}], 0 offen offset:{16*q}')
    a('L_end:\ns_endpgm')
    for blk in tail_blocks: a(blk)
    a('L_agent:')
    a(f'''s_cmp_lg_u32 s{sW}, 0
          s_cbranch_scc1 L_agent_end
          v_mul_u32_u24 v2, 57, v0
          v_lshrrev_b32 v2, 9, v2
          v_mul_u32_u24 v3, 9, v2
          v_sub_u32 v3, v0, v3
          v_mul_u32_u24 v2, {GS}, v2
          v_lshl_add_u32 v2, v3, 7, v2
          v_add_u32 v2, {G_REP}, v2
          v_mov_b32 v4, 0
          v_mov_b32 v5, 1
          s_lshl_b32 s{sD}, s{sQ}, 6
          v_mov_b32 v6, s{sD}
          s_mul_i32 s{sD}, s{sQ}, {7*GS}
          s_waitcnt lgkmcnt(0)
          s_add_u32 s{sEx}, s38, s{sD}
          s_addc_u32 s{sEx+1}, s39, 0
          s_and_b32 s{sEx+1}, s{sEx+1}, 0xffff
          s_mov_b32 s{sEx+2}, {7*GS}
          s_mov_b32 s{sEx+3}, 0x20000
          s_mov_b32 s{sDbg}, s36
          s_and_b32 s{sDbg+1}, s37, 0xffff
          s_mov_b32 s{sDbg+2}, 256
          s_mov_b32 s{sDbg+3}, 0x20000
          buffer_store_dword v4, v2, s[{sEx}:{sEx+3}], 0 offen sc1
          s_waitcnt vmcnt(0)
          s_mov_b64 exec, 1
          buffer_store_dword v5, v6, s[{sDbg}:{sDbg+3}], 0 offen sc1
          L_agent_end:
          s_endpgm''')
    body = a.finish()
    src = HDR + '.amdgcn_target "amdgcn-amd-amdhsa--gfx950"\n.text\n' + f'.globl {NAME}\n.p2align 8\n.type {NAME},@function\n' + body
    src += f'''.section .rodata,"a"
.p2align 6
.amdhsa_kernel {NAME}
  .amdhsa_next_free_vgpr 512
  .amdhsa_next_free_sgpr 102
  .amdhsa_accum_offset 256
  .amdhsa_group_segment_fixed_size 0
  .amdhsa_kernarg_size 48
  .amdhsa_user_sgpr_count 2
  .amdhsa_user_sgpr_kernarg_segment_ptr 1
  .amdhsa_system_sgpr_workgroup_id_x 1
.end_amdhsa_kernel
'''
    return src, stamp_names

if __name__ == '__main__':
    src, names = build(stamps=False)
    open('k1.s', 'w').write(src)
    src, names = build(stamps=['start','A0','A8','sent','V0','Vdone','rx','pub','first'])
    open('k1s.s', 'w').write(src)
    print(names)
```

```python
import re
NAME = 'standalone__sliding_local_dilated__prompt_kernel'
def rep_kernel(kind, ka, kb, mult):
    L = []; A = L.append
    A('.globl rep_kernel\n.p2align 8\n.type rep_kernel,@function\nrep_kernel:')
    A('s_cmp_ge_u32 s2, 1\ns_cbranch_scc1 R_end')
    A('s_load_dwordx2 s[8:9], s[0:1], 40\ns_waitcnt lgkmcnt(0)')
    A(f's_add_u32 s8, s8, {8<<20}\ns_addc_u32 s9, s9, 0\ns_and_b32 s9, s9, 0xffff\ns_mov_b32 s10, 0x100000\ns_mov_b32 s11, 0x20000')
    A('v_min_u32 v1, 61, v0\nv_lshlrev_b32 v1, 10, v1')
    for j in range(16):
        A(f'buffer_load_dword v{10+j}, v1, s[8:11], 0 offen offset:{j*64 + ka*4}')
        A(f'buffer_load_dword v{30+j}, v1, s[8:11], 0 offen offset:{j*64 + kb*4}')
    A('s_waitcnt vmcnt(0)')
    if kind == 'span':
        A('v_readfirstlane_b32 s20, v10\ns_nop 3\ns_sub_u32 s20, s20, 0x100000')
        for j in range(16): A(f'v_subrev_u32 v{10+j}, s20, v{10+j}\nv_subrev_u32 v{30+j}, s20, v{30+j}')
        for j in range(1, 16): A(f'v_min_u32 v10, v10, v{10+j}\nv_max_u32 v30, v30, v{30+j}')
        A('s_mov_b32 s21, -1\ns_mov_b32 s22, 0\ns_nop 1')
        for ln in range(64): A(f'v_readlane_b32 s23, v10, {ln}\nv_readlane_b32 s24, v30, {ln}\ns_nop 2\ns_min_u32 s21, s21, s23\ns_max_u32 s22, s22, s24')
        A('s_sub_u32 s25, s22, s21')
    elif kind in ('avg', 'max'):
        for j in range(16): A(f'v_sub_u32 v{30+j}, v{30+j}, v{10+j}')
        op = 'add' if kind == 'avg' else 'max'
        for j in range(1, 16): A(f'v_{op}_u32 v30, v30, v{30+j}')
        A('s_mov_b32 s25, 0\ns_nop 1')
        for ln in range(64): A(f'v_readlane_b32 s24, v30, {ln}\ns_nop 2\ns_{op}_u32 s25, s25, s24')
        if kind == 'avg': A('s_lshr_b32 s25, s25, 10')
    else:
        A('s_mov_b32 s25, 0')
    A(f's_mul_i32 s25, s25, {mult}\ns_min_u32 s25, s25, 200000')
    A('s_memrealtime s[26:27]\ns_waitcnt lgkmcnt(0)')
    A('R_spin:\ns_memrealtime s[28:29]\ns_waitcnt lgkmcnt(0)\ns_sub_u32 s28, s28, s26\ns_cmp_lt_u32 s28, s25\ns_cbranch_scc1 R_spin')
    A('R_end:\ns_endpgm')
    kd = '''.p2align 6
.amdhsa_kernel rep_kernel
  .amdhsa_next_free_vgpr 64
  .amdhsa_next_free_sgpr 48
  .amdhsa_accum_offset 64
  .amdhsa_group_segment_fixed_size 0
  .amdhsa_kernarg_size 48
  .amdhsa_user_sgpr_count 2
  .amdhsa_user_sgpr_kernarg_segment_ptr 1
  .amdhsa_system_sgpr_workgroup_id_x 1
.end_amdhsa_kernel
'''
    return '\n'.join(L) + '\n', kd
def wrap(src, kind, ka, kb, mult):
    code, kd = rep_kernel(kind, ka, kb, mult)
    m = re.search(r'; @launch (grid=.*)\n', src)
    src = src.replace(m.group(0), f'; @launch kernel={NAME} {m.group(1)}\n; @launch kernel=rep_kernel grid=(1,1,1) block=(64,1,1) lds=0\n')
    src = src.replace('.section .rodata,"a"', code + '.section .rodata,"a"') + kd
    return src

def rep_diff(wa, ka, wb, kb, bias, mult):
    L = []; A = L.append
    A('.globl rep_kernel\n.p2align 8\n.type rep_kernel,@function\nrep_kernel:')
    A('s_cmp_ge_u32 s2, 1\ns_cbranch_scc1 R_end')
    A('s_load_dwordx2 s[8:9], s[0:1], 40\ns_waitcnt lgkmcnt(0)')
    A(f's_add_u32 s8, s8, {8<<20}\ns_addc_u32 s9, s9, 0\ns_and_b32 s9, s9, 0xffff\ns_mov_b32 s10, 0x100000\ns_mov_b32 s11, 0x20000')
    A(f'v_mov_b32 v1, {wa*256 + ka*4}\nv_mov_b32 v2, {wb*256 + kb*4}')
    A('buffer_load_dword v10, v1, s[8:11], 0 offen\nbuffer_load_dword v11, v2, s[8:11], 0 offen\ns_waitcnt vmcnt(0)')
    A(f'v_sub_u32 v10, v10, v11\nv_add_u32 v10, {bias}, v10\ns_nop 1\nv_readfirstlane_b32 s25, v10\ns_nop 3')
    A(f's_mul_i32 s25, s25, {mult}\ns_min_u32 s25, s25, 200000')
    A('s_memrealtime s[26:27]\ns_waitcnt lgkmcnt(0)')
    A('R_spin:\ns_memrealtime s[28:29]\ns_waitcnt lgkmcnt(0)\ns_sub_u32 s28, s28, s26\ns_cmp_lt_u32 s28, s25\ns_cbranch_scc1 R_spin')
    A('R_end:\ns_endpgm')
    return '\n'.join(L) + '\n'
def wrap_diff(src, *args):
    _, kd = rep_kernel('none', 0, 0, 1)
    code = rep_diff(*args)
    m = re.search(r'; @launch (grid=.*)\n', src)
    src = src.replace(m.group(0), f'; @launch kernel={NAME} {m.group(1)}\n; @launch kernel=rep_kernel grid=(1,1,1) block=(64,1,1) lds=0\n')
    return src.replace('.section .rodata,"a"', code + '.section .rodata,"a"') + kd

def wrap_regime(src, w, k, thr, cold):
    s = wrap_diff(src, w, k, w, 0, 0, 1)
    a = 's_mul_i32 s25, s25, 1\n'
    assert a in s
    return s.replace(a, f's_cmp_gt_u32 s25, {thr}\ns_cselect_b32 s25, {"5000, 0" if cold else "0, 5000"}\n')

def gate(src, w, k, thr, cold=True):
    a = 's_min_u32 s25, s25, 200000\n'
    assert a in src
    g = f'''v_mov_b32 v50, {w*256}
buffer_load_dword v51, v50, s[8:11], 0 offen
buffer_load_dword v52, v50, s[8:11], 0 offen offset:{4*k}
s_waitcnt vmcnt(0)
v_sub_u32 v51, v52, v51
s_nop 1
v_readfirstlane_b32 s30, v51
s_nop 3
s_add_u32 s25, s25, 1000
s_cmp_gt_u32 s30, {thr}
s_cselect_b32 s25, {"s25, 0" if cold else "0, s25"}
'''
    return src.replace(a, a + g)

def wrap_total(src, mult=20, thr=650, cold=True):
    L = []; A = L.append
    A('.globl rep_kernel\n.p2align 8\n.type rep_kernel,@function\nrep_kernel:')
    A('s_memrealtime s[26:27]')
    A('s_cmp_ge_u32 s2, 1\ns_cbranch_scc1 R_end')
    A('s_load_dwordx2 s[8:9], s[0:1], 40\ns_waitcnt lgkmcnt(0)')
    A(f's_add_u32 s8, s8, {8<<20}\ns_addc_u32 s9, s9, 0\ns_mov_b32 s10, 0x1000\ns_mov_b32 s11, 0x20000')
    A('v_lshlrev_b32 v1, 4, v0\nbuffer_load_dwordx2 v[2:3], v1, s[8:11], 0 offen\ns_waitcnt vmcnt(0)')
    A('v_sub_u32 v2, s26, v2\ns_nop 1')
    A('v_readlane_b32 s20, v2, 1\nv_readlane_b32 s21, v2, 2\nv_readlane_b32 s22, v2, 3\nv_readlane_b32 s30, v3, 3\nv_readlane_b32 s31, v3, 2\ns_nop 3')
    A('s_add_u32 s25, s20, s21\ns_add_u32 s25, s25, s22')
    A(f's_mul_i32 s25, s25, {mult // 3}\ns_min_u32 s25, s25, 200000\ns_max_u32 s30, s30, s31')
    A(f's_cmp_gt_u32 s30, {thr}\ns_cselect_b32 s25, {"s25, 0" if cold else "0, s25"}')
    A('R_spin:\ns_memrealtime s[28:29]\ns_waitcnt lgkmcnt(0)\ns_sub_u32 s28, s28, s26\ns_cmp_lt_u32 s28, s25\ns_cbranch_scc1 R_spin')
    A('R_end:\ns_endpgm')
    _, kd = rep_kernel('none', 0, 0, 1)
    m = re.search(r'; @launch (grid=.*)\n', src)
    src = src.replace(m.group(0), f'; @launch kernel={NAME} {m.group(1)}\n; @launch kernel=rep_kernel grid=(1,1,1) block=(64,1,1) lds=0\n')
    return src.replace('.section .rodata,"a"', '\n'.join(L) + '\n.section .rodata,"a"') + kd
```

```python
import sys, json, importlib
sys.path.insert(0,'work')
import report
base = json.loads(sys.argv[2])
for k, c in enumerate(sys.argv[3:]):
    o = dict(base); o.update(json.loads(c)); o['x_tot'] = 1
    G = importlib.import_module(o.get('gen', sys.argv[1]))
    open(f'tt{k}.s','w').write(report.wrap_total(G.build(opts=o)[0], 21, cold=not o.get('warm')))
```
